```python
import torch

def _softmax(x, axis=-1):
    return torch.softmax(x, dim=axis)

def _gelu(x):
    return torch.nn.functional.gelu(x, approximate='tanh')

def _silu(x):
    return torch.nn.functional.silu(x)

def _sigmoid(x):
    return torch.sigmoid(x)

def _layernorm(x, axis=-1, eps=1e-05):
    m = x.mean(dim=axis, keepdim=True)
    v = x.var(dim=axis, keepdim=True, unbiased=False)
    return (x - m) / torch.sqrt(v + eps)

def _scatter_add(tgt, idx, src, axis=0):
    return tgt.clone().index_add_(axis, idx, src)

def _segment_sum(src, seg, n):
    out = torch.zeros((n,) + src.shape[1:], dtype=src.dtype)
    return out.index_add_(0, seg, src)

def _pad(x, pw):
    flat = tuple((v for pair in reversed(pw) for v in pair))
    return torch.nn.functional.pad(x, flat)
kernel_name = 'adaLN_cond__sliding_block_cached__geglu_ffn__decode'

def setup_inputs():

    _w = lambda a: (lambda t: t.to(torch.bfloat16) if t.is_floating_point() else t)(torch.as_tensor(a))

    def _A_setup():
        B, Sq, D = (1, 1, 1024)
        Hq, Hkv, Sk, Dh = (32, 4, 65536, 128)
        assert Hq % Hkv == 0, (Hq, Hkv)
        return {'x': _w((lambda *s: torch.randn(*s, dtype=torch.bfloat16) * 0.05)(B, Sq, D)), 'k_cache': _w((lambda *s: torch.randn(*s, dtype=torch.bfloat16) * 3.2)(B, Hkv, Sk, Dh)), 'v_cache': _w((lambda *s: torch.randn(*s, dtype=torch.bfloat16) * 0.4)(B, Hkv, Sk, Dh)), 'wq': _w((lambda *s: torch.randn(*s, dtype=torch.bfloat16) * 3.2)(D, Hq * Dh) * D ** (-0.5)), 'wo': _w((lambda *s: torch.randn(*s, dtype=torch.bfloat16) * 0.4)(Hq * Dh, D) * (Hq * Dh) ** (-0.5))}
    _A_in = _A_setup()

    def _B_setup():
        B, S, D, F = (1, 1, 1024, 3584)
        return {'x': _w((lambda *s: torch.randn(*s, dtype=torch.bfloat16) * 0.05)(B, S, D)), 'w_gate': _w((lambda *s: torch.randn(*s, dtype=torch.bfloat16) * 0.05)(D, F)), 'w_up': _w((lambda *s: torch.randn(*s, dtype=torch.bfloat16) * 0.05)(D, F)), 'w_down': _w((lambda *s: torch.randn(*s, dtype=torch.bfloat16) * 0.05)(F, D))}
    _B_in = _B_setup()
    return {'A_x': _A_in['x'], 'A_k_cache': _A_in['k_cache'], 'A_v_cache': _A_in['v_cache'], 'A_wq': _A_in['wq'], 'A_wo': _A_in['wo'], 'B_x': _B_in['x'], 'B_w_gate': _B_in['w_gate'], 'B_w_up': _B_in['w_up'], 'B_w_down': _B_in['w_down'], 'c': _w((lambda *s: torch.randn(*s, dtype=torch.bfloat16) * 0.2)(1, 1024) * 8.0), 'w_mod': _w((lambda *s: torch.randn(*s, dtype=torch.bfloat16) * 0.2)(1024, 6 * 1024) * 1024 ** (-0.5) * 8.0)}

def reference(A_x, A_k_cache, A_v_cache, A_wq, A_wo, B_x, B_w_gate, B_w_up, B_w_down, c, w_mod):

    def _A_ref(x, k_cache, v_cache, wq, wo):
        B, Sq, D = x.shape
        Hq, Dh = (32, 128)
        Hkv, Sk = (k_cache.shape[1], k_cache.shape[2])
        W = min(4096, max(256, Sk // 4))
        rep = Hq // Hkv
        q = (lambda x, *d: x.permute(*d))((x @ wq).reshape(B, Sq, Hq, Dh), 0, 2, 1, 3)
        k = (lambda x, n, axis: torch.repeat_interleave(x, n, dim=axis))(k_cache[:, :, Sk - W:, :], rep, axis=1)
        v = (lambda x, n, axis: torch.repeat_interleave(x, n, dim=axis))(v_cache[:, :, Sk - W:, :], rep, axis=1)
        scores = torch.einsum('bhqd,bhkd->bhqk', q, k) * Dh ** (-0.5)
        p = _softmax(scores, axis=-1)
        o = torch.einsum('bhqk,bhkd->bhqd', p, v)
        return (lambda x, *d: x.permute(*d))(o, 0, 2, 1, 3).reshape(B, Sq, Hq * Dh) @ wo

    def _B_ref(x, w_gate, w_up, w_down):
        return _gelu(x @ w_gate) * (x @ w_up) @ w_down
    x = A_x
    mod = (_silu(c) @ w_mod).reshape(c.shape[0], 6, 1, -1)
    sa, ca, ga, sb, cb, gb = (mod[:, 0].clone(), mod[:, 1].clone(), mod[:, 2].clone(), mod[:, 3].clone(), mod[:, 4].clone(), mod[:, 5].clone())
    h = _layernorm(x, axis=-1) * (1 + ca) + sa
    x = x + ga * _A_ref(h, A_k_cache, A_v_cache, A_wq, A_wo)
    h = _layernorm(x, axis=-1) * (1 + cb) + sb
    x = x + gb * _B_ref(h, B_w_gate, B_w_up, B_w_down)
    return x
```

```python
import sys
DIAG = '--diag' in sys.argv
def opt(n, d):
    for a in sys.argv:
        if a.startswith(n+'='): return int(a.split('=')[1])
    return d
THR = opt('thr', 4)
NAME='adaLN_cond__sliding_block_cached__geglu_ffn__decode_kernel'
o=[]; A=o.append
WH,WM,WQ,WO_,WML,WX,WGU,WST,WY = 0x1000,0x11000,0x21000,0x31000,0x131000,0x139000,0x159000,0x1AD000,0x1AE000
WSTAMP=0x400000
F={n:4*i for i,n in enumerate('H Q O ABC G P1 P2 P3 P4 PM P5 P6 C1 C2 C3 C4 CM C5 C6'.split())}
TOK=128
L_H,L_Q,L_O,L_A,L_G=1024,2048,6144,7168,10240
R1,R2,R6,RM,R4,R5,L_OP,L_ML=12288,13312,14336,15360,16384,18432,24576,40960
LDS=41984
uid=[0]
def lab(p='L'):
    uid[0]+=1; return f'{p}{uid[0]}'
nst=[0]
def stamp(i):
    if DIAG: A(f's_memrealtime s[62:63]\ns_waitcnt lgkmcnt(0)\ns_mov_b32 s{64+i}, s62')
def vr(a,n): return f'v[{a}:{a+n-1}]' if n>1 else f'v{a}'
def spin(flag,n,voff='v1'):
    l=lab('SP'); d=lab('SD')
    A(f'{l}:\nds_read_b32 v4, {voff} offset:{flag}\ns_waitcnt lgkmcnt(0)\nv_readfirstlane_b32 s40, v4\ns_sub_u32 s43, s43, 1\ns_cbranch_scc1 EXIT\ns_cmp_ge_u32 s40, {n}\ns_cbranch_scc1 {d}\ns_sleep 1\ns_branch {l}\n{d}:')
def signal(flag,voff='v1'):
    A(f's_mov_b64 exec, 1\nds_add_u32 {voff}, v2 offset:{flag}\ns_mov_b64 exec, -1')
def base(dst,src,soff=None,imm=0):
    if soff is None: A(f's_add_u32 s{dst}, s{src}, {imm}\ns_addc_u32 s{dst+1}, s{src+1}, 0')
    else:
        if imm: A(f's_add_u32 {soff}, {soff}, {imm}')
        A(f's_add_u32 s{dst}, s{src}, {soff}\ns_addc_u32 s{dst+1}, s{src+1}, 0')
def wloads(n,W,voff,sb,pitch,thr_from=0,last_tok=None):
    for i in range(n):
        A(f'global_load_dwordx4 {vr(W+4*i,4)}, {voff}, s[{sb}:{sb+1}] nt')
        if i<n-1: A(f's_add_u32 s{sb}, s{sb}, {pitch}\ns_addc_u32 s{sb+1}, s{sb+1}, 0')
        if i>=thr_from: A(f's_waitcnt vmcnt({THR})')
def zero(a,n):
    for i in range(n): A(f'v_mov_b32 v{a+i}, 0')
def gemv1(W,act,acc,hi):
    A(f'v_lshlrev_b32 v{hi}, 16, v{act}')
    for j in range(4): A(f'v_dot2c_f32_bf16 v{acc+2*j}, v{W+j}, v{act}')
    for j in range(4): A(f'v_dot2c_f32_bf16 v{acc+2*j+1}, v{W+j}, v{hi}')
def red8(a,x8):
    A('s_nop 2')
    for j in range(4): A(f'v_permlane32_swap_b32 v{a+j}, v{a+j+4}')
    for j in range(4): A(f'v_add_f32 v{a+j}, v{a+j}, v{a+j+4}')
    A('s_nop 0')
    for j in range(2): A(f'v_permlane16_swap_b32 v{a+j}, v{a+j+2}')
    for j in range(2): A(f'v_add_f32 v{a+j}, v{a+j}, v{a+j+2}')
    if x8:
        A('s_nop 0')
        for j in range(2): A(f'v_add_f32_dpp v{a+j}, v{a+j}, v{a+j} row_ror:8 row_mask:0xf bank_mask:0xf')
def red4(a):
    A('s_nop 1')
    for j in range(2): A(f'v_permlane32_swap_b32 v{a+j}, v{a+j+2}')
    for j in range(2): A(f'v_add_f32 v{a+j}, v{a+j}, v{a+j+2}')
    A(f's_nop 1\nv_permlane16_swap_b32 v{a}, v{a+1}\nv_add_f32 v{a}, v{a}, v{a+1}')
def tagpack(a):
    for j in range(4): A(f'v_and_or_b32 v{a+j}, v{a+j}, v3, s{36+j}')
def lastpub(cnt,red,wstride,ngran,vst,sb,pflag,t=8,rounds=1,rstep=0,vst2=None):
    d=lab('LP')
    A(f's_mov_b64 exec, 1\nds_add_rtn_u32 v4, v1, v2 offset:{cnt}\ns_mov_b64 exec, -1\ns_waitcnt lgkmcnt(0)\nv_readfirstlane_b32 s40, v4\ns_cmp_lg_u32 s40, 3\ns_cbranch_scc1 {d}')
    A(f's_mov_b32 exec_lo, {hex(((1<<ngran)-1)&0xffffffff)}\ns_mov_b32 exec_hi, {hex(((1<<ngran)-1)>>32)}')
    for r in range(rounds):
        for k in range(4): A(f'ds_read_b128 {vr(t+16*r+4*k,4)}, v5 offset:{red+k*wstride+r*rstep}')
    for r in range(rounds):
        u=t+16*r
        A(f's_waitcnt lgkmcnt({2+4*(rounds-1-r)})')
        for j in range(4): A(f'v_add_f32 v{u+j}, v{u+j}, v{u+4+j}')
        A(f's_waitcnt lgkmcnt({4*(rounds-1-r)})')
        for j in range(4): A(f'v_add_f32 v{u+8+j}, v{u+8+j}, v{u+12+j}')
        for j in range(4): A(f'v_add_f32 v{u+j}, v{u+j}, v{u+8+j}')
        tagpack(u)
        A(f'global_store_dwordx4 {vst if r==0 else vst2}, {vr(u,4)}, s[{sb}:{sb+1}] sc1')
    A('s_mov_b64 exec, -1')
    signal(pflag)
    A(f'{d}:')
def gather(loads,D,lanes=None):
    n=len(loads); L=lab('G')
    full='-1' if lanes is None else lanes
    for i in range(n): A(f's_mov_b64 s[{44+2*i}:{45+2*i}], {full}')
    A(f'{L}:')
    for i,(vo,sb,im) in enumerate(loads):
        k=lab('K')
        A(f's_mov_b64 exec, s[{44+2*i}:{45+2*i}]\ns_cbranch_execz {k}\nglobal_load_dwordx4 {vr(D+4*i,4)}, {vo}, s[{sb}:{sb+1}] offset:{im} sc1\n{k}:')
    A(f's_mov_b64 exec, {full}\ns_mov_b64 vcc, 0')
    A('s_waitcnt vmcnt(0)')
    for i in range(n):
        r=D+4*i
        A(f'v_perm_b32 v4, v{r+1}, v{r}, s41\nv_perm_b32 v6, v{r+3}, v{r+2}, s42\nv_or_b32 v4, v4, v6\nv_cmp_ne_u32 s[{44+2*i}:{45+2*i}], s35, v4')
    A('s_sub_u32 s43, s43, 64\ns_cbranch_scc1 EXIT')
    for i in range(n): A(f's_or_b64 vcc, vcc, s[{44+2*i}:{45+2*i}]')
    A(f's_cbranch_scc1 {L}\ns_mov_b64 exec, -1')
def rb(d,s): A(f'v_cvt_pk_bf16_f32 v{d}, 0, {s}')
def lo(d,s): A(f'v_cvt_pk_bf16_f32 v{d}, {s}, 0')
def silu_lo(r,t):
    A(f'v_mul_f32 v{t}, 0xbfb8aa3b, v{r}\nv_exp_f32 v{t}, v{t}\ns_nop 0\nv_add_f32 v{t}, 1.0, v{t}\nv_rcp_f32 v{t}, v{t}\ns_nop 0\nv_mul_f32 v{r}, v{r}, v{t}')
    lo(r,f'v{r}')
def wsum(r,t,op='add'):
    for c in ('quad_perm:[1,0,3,2]','quad_perm:[2,3,0,1]','row_ror:4','row_ror:8'):
        A(f's_nop 1\nv_{op}_f32_dpp v{r}, v{r}, v{r} {c} row_mask:0xf bank_mask:0xf')
    for p in (16,32):
        A(f'v_mov_b32 v{t}, v{r}\ns_nop 1\nv_permlane{p}_swap_b32 v{r}, v{t}\nv_{op}_f32 v{r}, v{r}, v{t}')
def fin():
    if DIAG:
        A('s_lshl_b32 s40, s2, 4\ns_add_u32 s40, s40, s3\ns_lshl_b32 s40, s40, 6')
        base(30,30,'s40',WSTAMP)
        for i in range(16): A(f'v_mov_b32 v{8+i}, s{64+i}')
        for i in range(4): A(f'global_store_dwordx4 v1, {vr(8+4*i,4)}, s[30:31] offset:{16*i}')
    A('s_endpgm')

A(f'; @launch grid=(256,1,1) block=(1024,1,1) lds={LDS}')
A(f'.amdgcn_target "amdgcn-amd-amdhsa--gfx950"\n.text\n.globl {NAME}\n.p2align 8\n.type {NAME},@function\n{NAME}:')
A('s_cmp_ge_u32 s2, 256\ns_cbranch_scc1 EXIT')
A('s_load_dwordx16 s[4:19], s[0:1], 0\ns_load_dwordx8 s[20:27], s[0:1], 64\ns_load_dwordx4 s[28:31], s[0:1], 96')
if DIAG:
    for i in range(16): A(f's_mov_b32 s{64+i}, 0')
A('v_lshrrev_b32 v1, 6, v0\nv_and_b32 v0, 63, v0\nv_mov_b32 v2, 1\nv_readfirstlane_b32 s3, v1\nv_mov_b32 v1, 0\nv_mov_b32 v3, 0xffffff00\nv_lshlrev_b32 v5, 4, v0')
A('s_mov_b32 s41, 0x0c0c0400\ns_mov_b32 s42, 0x04000c0c\ns_mov_b32 s43, 0x40000')
A('s_and_b32 s34, s3, 3\ns_lshr_b32 s32, s3, 2\ns_lshl_b32 s33, s34, 2\nv_mov_b32 v7, s33')
stamp(0)
A('s_waitcnt lgkmcnt(0)\ns_load_dword s35, s[30:31], 0')
A('s_cmp_eq_u32 s32, 1\ns_cbranch_scc1 G1\ns_cmp_eq_u32 s32, 2\ns_cbranch_scc1 G2\ns_cmp_eq_u32 s32, 3\ns_cbranch_scc1 G3')
def start():
    A('s_waitcnt lgkmcnt(0)\ns_barrier\ns_add_u32 s35, s35, 1\ns_and_b32 s36, s35, 0xff\ns_bfe_u32 s37, s35, 0x80008\ns_bfe_u32 s38, s35, 0x80010\ns_lshr_b32 s39, s35, 24')
def redaddr(d,colmask,wmul):
    A(f'v_and_b32 v{d}, {colmask}, v0\nv_lshlrev_b32 v{d}, 5, v{d}\nv_lshrrev_b32 v4, 4, v0\nv_lshl_add_u32 v{d}, v4, 3, v{d}\ns_mul_i32 s40, s34, {wmul}\nv_add_u32 v{d}, s40, v{d}')
W1,W2,WK,WV=48,64,96,112
A('v_lshrrev_b32 v8, 3, v0\nv_and_b32 v9, 7, v0\nv_lshlrev_b32 v9, 4, v9')
A('s_and_b32 s44, s2, 31\ns_lshr_b32 s45, s2, 5\ns_lshl_b32 s45, s45, 7\ns_lshl_b32 s46, s34, 5\ns_add_u32 s45, s45, s46')
A('s_lshl_b32 s46, s45, 1'); base(22,22,'s46')
A('v_lshlrev_b32 v10, 3, v8\nglobal_load_dwordx2 v[24:25], v10, s[22:23]')
A('s_mul_i32 s46, s45, 12288\ns_lshl_b32 s47, s44, 7\ns_add_u32 s46, s46, s47'); base(24,24,'s46')
A('v_mul_u32_u24 v10, 49152, v8\nv_add_u32 v10, v10, v9')
wloads(4,W1,'v10',24,12288,99)
A('s_and_b32 s46, s2, 63\ns_lshr_b32 s47, s2, 6\ns_lshl_b32 s48, s47, 8\ns_lshl_b32 s49, s34, 6\ns_add_u32 s48, s48, s49\ns_lshl_b32 s48, s48, 13\ns_lshl_b32 s49, s46, 7\ns_add_u32 s48, s48, s49')
base(10,10,'s48')
A('v_lshlrev_b32 v11, 16, v8\nv_add_u32 v11, v11, v9')
wloads(2,W2,'v11',10,8192,99); base(10,10,None,8192)
A('s_lshl_b32 s48, s47, 24\ns_lshl_b32 s49, s46, 14\ns_add_u32 s48, s48, s49\ns_lshl_b32 s49, s34, 12\ns_add_u32 s48, s48, s49\ns_add_u32 s48, s48, 15728640')
base(6,6,'s48'); base(8,8,'s48')
A('v_and_b32 v12, 15, v0\nv_lshrrev_b32 v13, 4, v0\nv_lshlrev_b32 v14, 8, v12\nv_lshl_add_u32 v14, v13, 4, v14')
A('v_lshlrev_b32 v15, 10, v13\nv_lshl_add_u32 v15, v12, 4, v15')
redaddr(16,7,256)
zero(28,8)
start(); stamp(1)
A('s_waitcnt vmcnt(6)')
A('v_and_b32 v27, 0xffff0000, v25\nv_lshlrev_b32 v26, 16, v25\nv_and_b32 v25, 0xffff0000, v24\nv_lshlrev_b32 v24, 16, v24')
for i in range(4): silu_lo(24+i,4)
for i in range(4):
    A(f's_waitcnt vmcnt({5-i if i==0 else 5})')
    gemv1(W1+4*i,24+i,28,6)
    A(f'global_load_dwordx4 {vr(W2+8+4*i,4)}, v11, s[10:11] nt'); base(10,10,None,8192)
red8(28,True)
A(f'ds_write_b64 v16, v[28:29] offset:{R1}')
A('s_lshr_b32 s48, s2, 5\ns_lshl_b32 s48, s48, 13\ns_lshl_b32 s49, s44, 8\ns_add_u32 s48, s48, s49'); base(50,30,'s48',WH)
lastpub(F['C1'],R1,256,16,'v5',50,F['P1'],t=28)
stamp(2)
A(f's_waitcnt vmcnt({THR})')
wloads(2,W2+24,'v11',10,8192)
for t in range(4): A(f'global_load_dwordx4 {vr(WK+4*t,4)}, v14, s[6:7] offset:{64*t} nt\ns_waitcnt vmcnt({THR})')
for t in range(4): A(f'global_load_dwordx4 {vr(WV+4*t,4)}, v15, s[8:9] offset:{256*t} nt\ns_waitcnt vmcnt({THR if t<3 else THR-2})')
signal(TOK,'v7')
stamp(3)
zero(28,8)
A('s_lshl_b32 s48, s34, 8\nv_lshlrev_b32 v10, 5, v8\nv_add_u32 v10, s48, v10')
A('s_lshl_b32 s48, s47, 14\ns_lshl_b32 s49, s46, 8\ns_add_u32 s48, s48, s49'); base(50,30,'s48',WQ)
spin(F['H'],4)
A(f'ds_read_b128 v[20:23], v10 offset:{L_H}\nds_read_b128 v[24:27], v10 offset:{L_H+16}\ns_waitcnt lgkmcnt(0)')
stamp(4)
for i in range(8): gemv1(W2+4*i,20+i,28,6)
red8(28,True)
A(f'ds_write_b64 v16, v[28:29] offset:{R2}')
lastpub(F['C2'],R2,256,16,'v5',50,F['P2'],t=28)
stamp(5)
A('s_waitcnt vmcnt(0)\ns_mov_b32 s48, 0x05040100\ns_mov_b32 s49, 0x07060302')
for e in range(8):
    for h in range(2): A(f'v_perm_b32 v{64+2*e+h}, v{WV+8*h+4+e//2}, v{WV+8*h+e//2}, s{48+(e&1)}')
A('v_and_b32 v10, 7, v0\nv_mul_u32_u24 v10, 272, v10\nv_lshl_add_u32 v10, v13, 4, v10')
zero(28,4)
A('s_lshl_b32 s48, s47, 3\ns_lshl_b32 s49, s34, 1\ns_add_u32 s48, s48, s49\ns_lshl_b32 s48, s48, 6\ns_add_u32 s48, s48, s46\ns_lshl_b32 s49, s48, 9')
base(50,30,'s49',WO_); A('s_lshl_b32 s49, s48, 4'); base(52,30,'s49',WML)
A('v_lshrrev_b32 v17, 5, v0\nv_and_b32 v18, 31, v0\nv_lshlrev_b32 v18, 4, v18\nv_lshl_add_u32 v19, v17, 15, v18\nv_lshlrev_b32 v20, 10, v17')
A('s_lshl_b32 s48, s34, 12\nv_lshlrev_b32 v21, 11, v13\nv_lshl_add_u32 v21, v12, 5, v21\nv_add_u32 v21, s48, v21')
A('s_lshl_b32 s48, s34, 10\nv_lshl_add_u32 v22, v17, 9, v18\nv_add_u32 v22, s48, v22')
A('s_lshl_b32 s48, s34, 6\nv_and_b32 v23, 7, v0\nv_lshlrev_b32 v23, 3, v23\nv_add_u32 v23, s48, v23\ns_lshl_b32 s48, s34, 4\nv_lshlrev_b32 v9, 3, v17\nv_add_u32 v9, s48, v9')
spin(F['Q'],4)
for t in range(4): A(f'ds_read_b128 {vr(32+4*t,4)}, v10 offset:{L_Q+64*t}')
stamp(6)
for t in range(4): A(f's_waitcnt lgkmcnt({3-t})\nv_mfma_f32_16x16x32_bf16 v[28:31], {vr(WK+4*t,4)}, {vr(32+4*t,4)}, v[28:31]')
A('s_nop 7')
for r in range(4): rb(28+r,f'v{28+r}')
for r in range(4): A(f'v_mul_f32 v{28+r}, 0x3db504f3, v{28+r}')
for r in range(4): rb(28+r,f'v{28+r}')
A('v_max3_f32 v24, v28, v29, v30\nv_max_f32 v24, v24, v31')
for p in (16,32): A(f'v_mov_b32 v4, v24\ns_nop 1\nv_permlane{p}_swap_b32 v24, v4\nv_max_f32 v24, v24, v4')
for r in range(4): A(f'v_sub_f32 v{28+r}, v{28+r}, v24')
for r in range(4): A(f'v_mul_f32 v{28+r}, 0x3fb8aa3b, v{28+r}')
for r in range(4): A(f'v_exp_f32 v{28+r}, v{28+r}')
A('s_nop 0\nv_cvt_pk_bf16_f32 v26, v28, v29\nv_cvt_pk_bf16_f32 v27, v30, v31\nv_add_f32 v25, v28, v29\nv_add_f32 v4, v30, v31\nv_add_f32 v25, v25, v4')
for e in range(8): A(f'v_mfma_f32_16x16x16_bf16 {vr(80+4*e,4)}, v[26:27], {vr(64+2*e,2)}, 0')
for p in (16,32): A(f'v_mov_b32 v4, v25\ns_nop 1\nv_permlane{p}_swap_b32 v25, v4\nv_add_f32 v25, v25, v4')
A(f'ds_write_b64 v23, v[24:25] offset:{L_ML}\ns_nop 2')
A('s_mov_b32 exec_hi, 0')
for r in range(4):
    for e in range(8): A(f'v_mov_b32 v{32+8*(r&1)+e}, v{80+4*e+r}')
    for h in range(2): A(f'ds_write_b128 v21, {vr(32+8*(r&1)+4*h,4)} offset:{L_OP+512*r+16*h}')
signal(F['C3']); spin(F['C3'],4)
for k in range(4): A(f'ds_read_b64 {vr(24+2*k,2)}, v9 offset:{L_ML+64*k}')
for k in range(4): A(f'ds_read_b128 {vr(32+4*k,4)}, v22 offset:{L_OP+4096*k}')
A('s_waitcnt lgkmcnt(4)\nv_max3_f32 v48, v24, v26, v28\nv_max_f32 v48, v48, v30')
for k in range(4): A(f'v_sub_f32 v{24+2*k}, v{24+2*k}, v48')
for k in range(4): A(f'v_mul_f32 v{24+2*k}, 0x3fb8aa3b, v{24+2*k}')
for k in range(4): A(f'v_exp_f32 v{24+2*k}, v{24+2*k}')
A('s_waitcnt lgkmcnt(0)\nv_mul_f32 v49, v24, v25')
for j in range(4): A(f'v_mul_f32 v{32+j}, v24, v{32+j}')
for k in range(1,4):
    for j in range(4): A(f'v_fmac_f32 v{32+j}, v{24+2*k}, v{32+4*k+j}')
    A(f'v_fmac_f32 v49, v{24+2*k}, v{25+2*k}')
tagpack(32)
A('global_store_dwordx4 v19, v[32:35], s[50:51] sc1\nv_mov_b32 v50, 0\nv_mov_b32 v51, 0')
tagpack(48)
A('s_mov_b32 exec_lo, 1\ns_mov_b32 exec_hi, 1\nglobal_store_dwordx4 v20, v[48:51], s[52:53] sc1')
signal(F['P3'])
stamp(7)
A('s_and_b32 s44, s2, 15\ns_lshr_b32 s45, s2, 4\ns_mul_i32 s46, s45, 224\ns_mul_i32 s47, s34, 56\ns_add_u32 s46, s46, s47\ns_lshl_b32 s46, s46, 11\ns_lshl_b32 s48, s44, 7\ns_add_u32 s46, s46, s48')
base(20,20,'s46')
A('v_and_b32 v9, 7, v0\nv_lshlrev_b32 v9, 4, v9\nv_mul_u32_u24 v10, 14336, v8\nv_add_u32 v10, v10, v9\nv_mul_u32_u24 v11, 28, v8\ns_lshl_b32 s47, s47, 2\nv_add_u32 v11, s47, v11')
A('s_lshl_b32 s48, s45, 12\ns_lshl_b32 s49, s44, 8\ns_add_u32 s48, s48, s49'); base(50,30,'s48',WY)
zero(28,8)
spin(TOK+32,1,'v7')
stamp(8)
wloads(7,64,'v10',20,2048)
spin(F['G'],4)
for i in range(7): A(f'ds_read_b32 v{20+i}, v11 offset:{L_G+4*i}')
A('s_waitcnt vmcnt(0) lgkmcnt(0)')
stamp(9)
for i in range(7): gemv1(64+4*i,20+i,28,6)
red8(28,True)
A(f'ds_write_b64 v16, v[28:29] offset:{R6}')
lastpub(F['C6'],R6,256,16,'v5',50,F['P6'],t=28)
stamp(10)
fin()
A('G1:')
A('v_lshrrev_b32 v8, 3, v0\nv_and_b32 v9, 7, v0\nv_lshlrev_b32 v9, 4, v9\nv_and_b32 v12, 15, v0\nv_lshrrev_b32 v13, 4, v0')
A('s_and_b32 s44, s2, 63\ns_lshr_b32 s45, s2, 6\ns_lshl_b32 s46, s45, 8\ns_lshl_b32 s47, s34, 6\ns_add_u32 s46, s46, s47\ns_lshl_b32 s47, s46, 1'); base(22,22,'s47')
A('v_lshlrev_b32 v10, 4, v8\nglobal_load_dwordx4 v[24:27], v10, s[22:23]')
A('s_mul_i32 s46, s46, 12288\ns_lshl_b32 s47, s44, 7\ns_add_u32 s46, s46, s47'); base(24,24,'s46',4096)
A('v_mul_u32_u24 v10, 0x18000, v8\nv_add_u32 v10, v10, v9')
A('s_lshl_b32 s48, s45, 14\ns_lshl_b32 s49, s44, 8\ns_add_u32 s48, s48, s49'); base(50,30,'s48',WM)
A('s_and_b32 s44, s2, 7\ns_lshr_b32 s45, s2, 3\ns_lshl_b32 s46, s45, 7\ns_lshl_b32 s47, s34, 5\ns_add_u32 s46, s46, s47\ns_lshl_b32 s46, s46, 11\ns_lshl_b32 s47, s44, 8\ns_add_u32 s46, s46, s47'); base(12,12,'s46')
A('v_lshlrev_b32 v11, 14, v13\nv_lshl_add_u32 v11, v12, 4, v11')
A('s_lshl_b32 s48, s45, 12\ns_lshl_b32 s49, s44, 9\ns_add_u32 s48, s48, s49'); base(52,30,'s48',WX)
redaddr(16,7,256); redaddr(17,15,512)
A('s_lshl_b32 s48, s34, 7\nv_lshlrev_b32 v18, 5, v13\nv_add_u32 v18, s48, v18')
start()
A('s_waitcnt vmcnt(0)')
for i in range(4): A(f'v_and_b32 v{37+2*i}, 0xffff0000, v{24+i}\nv_lshlrev_b32 v{36+2*i}, 16, v{24+i}')
for i in range(8): silu_lo(36+i,4)
zero(20,16)
spin(TOK,1,'v7'); stamp(1)
wloads(8,64,'v11',12,2048)
wloads(8,96,'v10',24,12288)
A(f's_waitcnt vmcnt({THR-2})'); signal(TOK+16,'v7'); stamp(2)
spin(F['O'],4)
A(f'ds_read_b128 v[44:47], v18 offset:{L_O}\nds_read_b128 v[48:51], v18 offset:{L_O+16}\ns_waitcnt lgkmcnt(0)')
stamp(3)
for i in range(8): gemv1(64+4*i,44+i,28,6)
red8(28,False)
A(f'ds_write_b64 v17, v[28:29] offset:{R4}')
lastpub(F['C4'],R4,512,32,'v5',52,F['P4'],t=44)
stamp(4)
A('s_waitcnt vmcnt(0)')
for i in range(8): gemv1(96+4*i,36+i,20,6)
red8(20,True)
A(f'ds_write_b64 v16, v[20:21] offset:{RM}')
lastpub(F['CM'],RM,256,16,'v5',50,F['PM'],t=44)
stamp(5)
fin()
A('G2:')
A('s_mul_i32 s45, s2, 1171\ns_lshr_b32 s45, s45, 16\ns_mul_i32 s46, s45, 56\ns_sub_u32 s44, s2, s46')
A('v_lshrrev_b32 v8, 3, v0\nv_and_b32 v9, 7, v0\nv_lshlrev_b32 v9, 4, v9')
A('s_lshl_b32 s46, s45, 8\ns_lshl_b32 s47, s34, 6\ns_add_u32 s46, s46, s47\ns_mul_i32 s46, s46, 7168\ns_lshl_b32 s47, s44, 7\ns_add_u32 s46, s46, s47')
base(16,16,'s46'); base(18,18,'s46')
A('v_mul_u32_u24 v10, 57344, v8\nv_add_u32 v10, v10, v9')
A('s_mul_i32 s48, s45, 14336\ns_lshl_b32 s49, s44, 8\ns_add_u32 s48, s48, s49'); base(50,30,'s48',WGU)
A('v_lshrrev_b32 v11, 4, v0\nv_mul_u32_u24 v11, 57344, v11\nv_and_b32 v12, 15, v0\nv_lshl_add_u32 v11, v12, 4, v11\nv_add_u32 v12, 172032, v11')
redaddr(13,7,1536)
A('s_lshl_b32 s48, s34, 8\nv_lshlrev_b32 v14, 5, v8\nv_add_u32 v14, s48, v14')
zero(16,48)
start()
spin(TOK+16,1,'v7'); stamp(1)
A('s_cmp_ge_u32 s2, 224\ns_cbranch_scc0 G2W'); signal(TOK+32,'v7'); fin()
A('G2W:')
for i in range(8):
    for m,sb in ((0,16),(1,18)):
        A(f'global_load_dwordx4 {vr(64+8*i+4*m,4)}, v10, s[{sb}:{sb+1}] nt')
        if i<7: base(sb,sb,None,7168)
        A(f's_waitcnt vmcnt({THR})')
A(f's_waitcnt vmcnt({THR-2})'); signal(TOK+32,'v7'); stamp(2)
spin(F['ABC'],4); stamp(3)
for i in range(8):
    pass
for p in range(3):
    A(f'ds_read_b64 v[8:9], v14 offset:{L_A+1024*p}')
    for i2 in range(4):
        a=8 if i2%2==0 else 6
        A('s_waitcnt lgkmcnt(0)')
        if i2<3: A(f'ds_read_b64 {vr(14-a,2)}, v14 offset:{L_A+1024*p+8*(i2+1)}')
        if p==0 and i2==3: A('s_waitcnt vmcnt(0)')
        for k in range(2):
            i=2*i2+k
            gemv1(64+8*i,a+k,16+16*p,4)
            for j in range(4): A(f'v_dot2c_f32_bf16 v{24+16*p+2*j}, v{68+8*i+j}, v{a+k}')
            for j in range(4): A(f'v_dot2c_f32_bf16 v{25+16*p+2*j}, v{68+8*i+j}, v4')
for q in range(6):
    red8(16+8*q,True); A(f'ds_write_b64 v13, {vr(16+8*q,2)} offset:{R5+256*q}')
lastpub(F['C5'],R5,1536,48,'v11',50,F['P5'],t=16,rounds=2,rstep=768,vst2='v12')
stamp(4)
fin()
A('G3:\ns_setprio 3')
A(f'v_lshlrev_b32 v8, 2, v0\nds_write_b32 v8, v1')
A('v_and_b32 v12, 15, v0\nv_lshrrev_b32 v13, 4, v0\nv_lshlrev_b32 v8, 5, v0')
A('global_load_dwordx4 v[16:19], v8, s[4:5]\nglobal_load_dwordx4 v[20:23], v8, s[4:5] offset:16')
A('v_lshl_add_u32 v14, v12, 2, v13\ns_lshl_b32 s48, s34, 6\nv_add_u32 v14, s48, v14')
A('s_lshr_b32 s28, s2, 6\ns_mul_i32 s29, s2, 1171\ns_lshr_b32 s29, s29, 16')
A('s_lshl_b32 s48, s28, 9\nv_lshl_add_u32 v9, v14, 1, s48\nglobal_load_ushort v10, v9, s[4:5]')
A('s_and_b32 s48, s29, 3\ns_lshl_b32 s48, s48, 9\nv_lshl_add_u32 v15, v14, 1, s48\nglobal_load_ushort v11, v15, s[4:5]')
A('v_lshlrev_b32 v14, 2, v14')
start()
A('s_waitcnt vmcnt(0)')
for i in range(8): A(f'v_and_b32 v{33+2*i}, 0xffff0000, v{16+i}\nv_lshlrev_b32 v{32+2*i}, 16, v{16+i}')
A('v_add_f32 v24, v32, v33')
for i in range(2,16): A(f'v_add_f32 v24, v24, v{32+i}')
wsum(24,4); A('v_mul_f32 v24, 0x3a800000, v24\nv_mov_b32 v25, 0')
for i in range(16): A(f'v_sub_f32 v4, v{32+i}, v24\nv_fmac_f32 v25, v4, v4')
wsum(25,4); A('v_mul_f32 v25, 0x3a800000, v25')
rb(24,'v24'); rb(25,'v25'); A('v_add_f32 v25, 0x3727c5ac, v25'); rb(25,'v25'); A('v_sqrt_f32 v25, v25\ns_nop 0'); rb(25,'v25')
A('v_rcp_f32 v25, v25\nv_lshlrev_b32 v10, 16, v10\nv_lshlrev_b32 v11, 16, v11\nv_sub_f32 v10, v10, v24'); rb(10,'v10'); A('v_mul_f32 v10, v10, v25'); rb(10,'v10')
A('s_lshl_b32 s48, s28, 10\ns_lshl_b32 s49, s34, 8\ns_add_u32 s48, s48, s49'); base(4,30,'s48',WH); base(6,4,None,4096); base(8,4,None,8192); base(10,4,None,12288)
A('v_lshlrev_b32 v16, 14, v13\nv_lshl_add_u32 v16, v12, 4, v16')
stamp(1); spin(F['P1'],1); stamp(2)
gather([('v16',4,0),('v16',8,0),('v16',6,0),('v16',10,0)],32)
stamp(3)
for j in range(4): A(f'v_add_f32 v{32+j}, v{32+j}, v{36+j}\nv_add_f32 v{40+j}, v{40+j}, v{44+j}')
red4(32); red4(40)
rb(32,'v32'); rb(40,'v40'); A('v_add_f32 v40, 1.0, v40'); rb(40,'v40'); A('v_mul_f32 v40, v40, v10'); rb(40,'v40'); A('v_add_f32 v40, v40, v32'); lo(40,'v40')
A(f'ds_write_b32 v14, v40 offset:{L_H}'); signal(F['H'])
A('s_lshl_b32 s48, s28, 12\ns_lshl_b32 s49, s34, 10\ns_add_u32 s48, s48, s49'); base(4,30,'s48',WQ); base(6,4,None,16384); base(8,4,None,32768); base(10,4,None,49152)
A('v_lshrrev_b32 v17, 5, v0\ns_lshl_b32 s48, s34, 1\nv_add_u32 v17, s48, v17\nv_mul_u32_u24 v17, 272, v17\nv_and_b32 v18, 31, v0\nv_lshl_add_u32 v17, v18, 3, v17')
spin(F['P2'],1); stamp(4)
gather([('v5',4,0),('v5',6,0),('v5',8,0),('v5',10,0)],32)
stamp(5)
for j in range(4): A(f'v_add_f32 v{32+j}, v{32+j}, v{36+j}\nv_add_f32 v{40+j}, v{40+j}, v{44+j}')
for j in range(4): A(f'v_add_f32 v{32+j}, v{32+j}, v{40+j}')
A(f'v_cvt_pk_bf16_f32 v32, v32, v33\nv_cvt_pk_bf16_f32 v33, v34, v35\nds_write_b64 v17, v[32:33] offset:{L_Q}'); signal(F['Q'])
A('s_lshr_b32 s48, s2, 3\ns_lshl_b32 s49, s48, 10'); base(12,30,'s49',WML)
A('s_lshl_b32 s48, s48, 15\ns_lshl_b32 s49, s34, 7\ns_add_u32 s48, s48, s49'); base(4,30,'s48',WO_+4096); base(6,4,None,8192); base(8,4,None,16384); base(10,4,None,24576)
A('v_lshrrev_b32 v18, 3, v0\nv_and_b32 v19, 7, v0\nv_lshlrev_b32 v16, 9, v18\nv_lshl_add_u32 v16, v19, 4, v16\nv_lshlrev_b32 v18, 2, v18')
A('v_lshl_add_u32 v17, v19, 2, v13\ns_lshl_b32 s48, s34, 5\nv_add_u32 v17, s48, v17\nv_lshlrev_b32 v17, 2, v17')
spin(F['P3'],4); stamp(6)
gather([('v5',12,0)]+[('v16',4+2*(i//2),-4096 if i%2==0 else 0) for i in range(8)],28)
stamp(7)
A('v_and_b32 v28, v3, v28\nv_mov_b32 v24, v28'); wsum(24,4,'max')
A('v_sub_f32 v28, v28, v24\nv_mul_f32 v28, 0x3fb8aa3b, v28\nv_exp_f32 v28, v28\ns_nop 0')
for i in range(8): A(f'ds_bpermute_b32 v{64+i}, v18, v28 offset:{32*i}')
A('v_mul_f32 v29, v29, v28'); wsum(29,4); A('v_rcp_f32 v29, v29\ns_waitcnt lgkmcnt(0)')
for j in range(4): A(f'v_mul_f32 v{32+j}, v64, v{32+j}')
for i in range(1,8):
    for j in range(4): A(f'v_fmac_f32 v{32+j}, v{64+i}, v{32+4*i+j}')
red4(32); A('s_nop 1\nv_add_f32_dpp v32, v32, v32 row_ror:8 row_mask:0xf bank_mask:0xf\nv_mul_f32 v32, v32, v29'); lo(32,'v32')
A(f'ds_write_b32 v17, v32 offset:{L_O}'); signal(F['O'])
A('s_cmp_ge_u32 s2, 224\ns_cbranch_scc1 G3GU')
A('s_lshl_b32 s48, s29, 10\ns_lshl_b32 s49, s34, 8\ns_add_u32 s48, s48, s49'); base(4,30,'s48',WX)
base(6,4,None,0x8000); base(8,4,None,0x10000); base(10,4,None,0x18000)
A('s_lshl_b32 s48, s29, 10\ns_lshl_b32 s49, s34, 8\ns_add_u32 s48, s48, s49'); base(12,30,'s48',WM+4096); base(14,12,None,8192)
A('v_lshlrev_b32 v16, 12, v13\nv_lshl_add_u32 v16, v12, 4, v16\nv_add_u32 v17, 16384, v16\nv_lshlrev_b32 v18, 14, v13\nv_lshl_add_u32 v18, v12, 4, v18')
spin(F['P4'],1); stamp(8)
gather([('v16' if i%2==0 else 'v17',4+2*(i//2),0) for i in range(8)],32)
stamp(9)
for i in range(1,8):
    for j in range(4): A(f'v_add_f32 v{32+j}, v{32+j}, v{32+4*i+j}')
red4(32); rb(20,'v32')
spin(F['PM'],1)
gather([('v18',12,-4096),('v18',12,0),('v18',14,-4096),('v18',14,0)],32)
stamp(10)
for i in range(4): red4(32+4*i)
for i in range(4): rb(32+4*i,f'v{32+4*i}')
A('v_mul_f32 v20, v20, v32'); rb(20,'v20'); A('v_add_f32 v20, v20, v11'); rb(20,'v20')
A('v_mov_b32 v21, v44\nv_add_f32 v40, 1.0, v40'); rb(40,'v40'); A('v_mul_f32 v41, v40, v20'); lo(41,'v41'); A('v_lshrrev_b32 v40, 16, v40\nv_lshrrev_b32 v36, 16, v36')
A(f'ds_write_b32 v14, v41 offset:{L_A}\nds_write_b32 v14, v40 offset:{L_A+1024}\nds_write_b32 v14, v36 offset:{L_A+2048}'); signal(F['ABC'])
A('s_mul_i32 s48, s29, 56\ns_cmp_lg_u32 s48, s2\ns_cbranch_scc1 G3GU0')
A('v_mov_b32 v32, v20\nv_mul_f32 v33, v20, v20\nv_mov_b32 v34, 0\nv_mov_b32 v35, 0'); wsum(32,4); wsum(33,4); tagpack(32)
A('s_lshl_b32 s48, s29, 6\ns_lshl_b32 s49, s34, 4\ns_add_u32 s48, s48, s49'); base(4,30,'s48',WST)
A('s_mov_b64 exec, 1\nglobal_store_dwordx4 v1, v[32:35], s[4:5] sc1\ns_mov_b64 exec, -1')
A('G3GU0:'); spin(F['P5'],1)
A('G3GU:')
A('s_lshr_b32 s48, s2, 4\ns_mul_i32 s48, s48, 896\ns_mul_i32 s49, s34, 224\ns_add_u32 s48, s48, s49'); base(4,30,'s48',WGU)
for q in range(1,6): base(4+2*q,2+2*q,None,57344)
base(16,30,None,WST)
A('v_mul_u32_u24 v16, 14336, v13\nv_min_u32 v17, 13, v12\nv_lshl_add_u32 v16, v17, 4, v16\nv_lshlrev_b32 v18, 4, v12')
A('v_lshl_add_u32 v17, v17, 2, v13\ns_mul_i32 s48, s34, 56\nv_add_u32 v17, s48, v17\nv_lshlrev_b32 v17, 2, v17')
stamp(11)
gather([('v18',16,0)]+[('v16',4+2*q,0) for q in range(6)],28)
stamp(12)
for c in ('quad_perm:[1,0,3,2]','quad_perm:[2,3,0,1]','row_ror:4','row_ror:8'):
    A(f's_nop 0\nv_add_f32_dpp v28, v28, v28 {c} row_mask:0xf bank_mask:0xf\nv_add_f32_dpp v29, v29, v29 {c} row_mask:0xf bank_mask:0xf')
for q in range(6): red4(32+4*q)
A('v_mul_f32 v28, 0x3a800000, v28\nv_mul_f32 v29, 0x3a800000, v29\nv_fma_f32 v29, -v28, v28, v29\nv_add_f32 v29, 0x3727c5ac, v29\nv_rsq_f32 v29, v29')
A('v_fma_f32 v32, -v28, v40, v32\nv_fma_f32 v36, -v28, v44, v36\nv_fma_f32 v32, v32, v29, v48\nv_fma_f32 v36, v36, v29, v52'); rb(32,'v32'); rb(36,'v36')
A('v_mul_f32 v33, v32, v32\nv_mul_f32 v33, 0x3d372713, v33\nv_fma_f32 v33, v33, v32, v32\nv_mul_f32 v33, 0xc0135761, v33\nv_exp_f32 v33, v33\ns_nop 0\nv_add_f32 v33, 1.0, v33\nv_rcp_f32 v33, v33\ns_nop 0\nv_mul_f32 v32, v32, v33')
rb(32,'v32'); A('v_mul_f32 v32, v32, v36'); lo(32,'v32')
A(f'ds_write_b32 v17, v32 offset:{L_G}'); signal(F['G'])
A('s_mul_i32 s48, s29, 56\ns_cmp_lg_u32 s48, s2\ns_cbranch_scc1 G3END\ns_cmp_ge_u32 s2, 224\ns_cbranch_scc1 G3END')
A('s_lshl_b32 s48, s29, 10\ns_lshl_b32 s49, s34, 8\ns_add_u32 s48, s48, s49'); base(4,30,'s48',WY); base(6,4,None,0x8000)
A('v_lshlrev_b32 v16, 12, v13\nv_lshl_add_u32 v16, v12, 4, v16\nv_add_u32 v17, 16384, v16')
spin(F['P6'],1); stamp(13)
gather([('v16',4,0),('v17',4,0),('v16',6,0),('v17',6,0)],32)
for j in range(4): A(f'v_add_f32 v{32+j}, v{32+j}, v{36+j}\nv_add_f32 v{40+j}, v{40+j}, v{44+j}')
for j in range(4): A(f'v_add_f32 v{32+j}, v{32+j}, v{40+j}')
red4(32); rb(32,'v32'); A('v_mul_f32 v32, v32, v21'); rb(32,'v32'); A('v_add_f32 v32, v32, v20'); lo(32,'v32')
A('global_store_short v15, v32, s[26:27]')
A('s_cmp_lg_u32 s2, 0\ns_cbranch_scc1 G3END\ns_cmp_lg_u32 s34, 0\ns_cbranch_scc1 G3END\nv_mov_b32 v4, s35\ns_mov_b64 exec, 1\nglobal_store_dword v1, v4, s[30:31] sc1\ns_mov_b64 exec, -1')
A('G3END:'); stamp(14)
fin()
A('EXIT:\ns_endpgm')
A(f'''.section .rodata,"a"
.p2align 6
.amdhsa_kernel {NAME}
  .amdhsa_next_free_vgpr 128
  .amdhsa_next_free_sgpr 96
  .amdhsa_accum_offset 128
  .amdhsa_group_segment_fixed_size 0
  .amdhsa_kernarg_size 112
  .amdhsa_user_sgpr_count 2
  .amdhsa_user_sgpr_kernarg_segment_ptr 1
  .amdhsa_system_sgpr_workgroup_id_x 1
.end_amdhsa_kernel''')
print("\n".join(o))
```

```python
import sys
DBG = '--dbg' in sys.argv
DIAG = '--diag' in sys.argv or DBG
def opt(n, d):
    for a in sys.argv:
        if a.startswith(n+'='): return int(a.split('=')[1])
    return d
THR = opt('thr', 4)
PRE=opt('pre',0); STF=['sc1','sc0 sc1','sc1 nt','sc0 sc1 nt'][opt('st',0)]; LDF=['sc1','sc0 sc1','sc1 nt'][opt('ld',0)]
NAME='adaLN_cond__sliding_block_cached__geglu_ffn__decode_kernel'
o=[]; A=o.append
WH,WM,WQ,WO_,WML,WX,WGU,WST,WY = 0x1000,0x11000,0x21000,0x31000,0x131000,0x139000,0x159000,0x1AD000,0x1AE000
WSTAMP=0x400000
F={n:4*i for i,n in enumerate('H Q O ABC G P1 P2 P3 P4 PM P5 P6 C1 C2 C3 C4 CM C5 C6'.split())}
TOK=128
L_H,L_Q,L_O,L_A,L_G=1024,2048,6144,7168,10240
R1,R2,R6,RM,R4,R5,L_OP,L_ML=12288,13312,14336,15360,16384,18432,24576,40960
LDS=41984
uid=[0]
def lab(p='L'):
    uid[0]+=1; return f'{p}{uid[0]}'
nst=[0]
def stamp(i):
    if DIAG: A(f's_memrealtime s[62:63]\ns_waitcnt lgkmcnt(0)\ns_mov_b32 s{64+i}, s62')
def vr(a,n): return f'v[{a}:{a+n-1}]' if n>1 else f'v{a}'
def spin(flag,n,voff='v1'):
    l=lab('SP'); d=lab('SD')
    A(f'{l}:\nds_read_b32 v4, {voff} offset:{flag}\ns_waitcnt lgkmcnt(0)\nv_readfirstlane_b32 s40, v4\ns_sub_u32 s43, s43, 1\ns_cbranch_scc1 EXIT\ns_cmp_ge_u32 s40, {n}\ns_cbranch_scc1 {d}\ns_sleep 1\ns_branch {l}\n{d}:')
def signal(flag,voff='v1'):
    A(f's_mov_b64 exec, 1\nds_add_u32 {voff}, v2 offset:{flag}\ns_mov_b64 exec, -1')
def base(dst,src,soff=None,imm=0):
    if soff is None: A(f's_add_u32 s{dst}, s{src}, {imm}\ns_addc_u32 s{dst+1}, s{src+1}, 0')
    else:
        if imm: A(f's_add_u32 {soff}, {soff}, {imm}')
        A(f's_add_u32 s{dst}, s{src}, {soff}\ns_addc_u32 s{dst+1}, s{src+1}, 0')
def wloads(n,W,voff,sb,pitch,thr_from=0,last_tok=None):
    for i in range(n):
        A(f'global_load_dwordx4 {vr(W+4*i,4)}, {voff}, s[{sb}:{sb+1}] nt')
        if i<n-1: A(f's_add_u32 s{sb}, s{sb}, {pitch}\ns_addc_u32 s{sb+1}, s{sb+1}, 0')
        if i>=thr_from: A(f's_waitcnt vmcnt({THR})')
def zero(a,n):
    for i in range(n): A(f'v_mov_b32 v{a+i}, 0')
def gemv1(W,act,acc,hi):
    A(f'v_lshlrev_b32 v{hi}, 16, v{act}')
    for j in range(4): A(f'v_dot2c_f32_bf16 v{acc+2*j}, v{W+j}, v{act}')
    for j in range(4): A(f'v_dot2c_f32_bf16 v{acc+2*j+1}, v{W+j}, v{hi}')
def red8(a,x8):
    A('s_nop 2')
    for j in range(4): A(f'v_permlane32_swap_b32 v{a+j}, v{a+j+4}')
    for j in range(4): A(f'v_add_f32 v{a+j}, v{a+j}, v{a+j+4}')
    A('s_nop 0')
    for j in range(2): A(f'v_permlane16_swap_b32 v{a+j}, v{a+j+2}')
    for j in range(2): A(f'v_add_f32 v{a+j}, v{a+j}, v{a+j+2}')
    if x8:
        A('s_nop 0')
        for j in range(2): A(f'v_add_f32_dpp v{a+j}, v{a+j}, v{a+j} row_ror:8 row_mask:0xf bank_mask:0xf')
def red4(a):
    A('s_nop 1')
    for j in range(2): A(f'v_permlane32_swap_b32 v{a+j}, v{a+j+2}')
    for j in range(2): A(f'v_add_f32 v{a+j}, v{a+j}, v{a+j+2}')
    A(f's_nop 1\nv_permlane16_swap_b32 v{a}, v{a+1}\nv_add_f32 v{a}, v{a}, v{a+1}')
def tagpack(a):
    for j in range(4): A(f'v_and_or_b32 v{a+j}, v{a+j}, v3, s{36+j}')
def lastpub(cnt,red,wstride,ngran,vst,sb,pflag,t=8,rounds=1,rstep=0,vst2=None):
    d=lab('LP')
    A(f's_mov_b64 exec, 1\nds_add_rtn_u32 v4, v1, v2 offset:{cnt}\ns_mov_b64 exec, -1\ns_waitcnt lgkmcnt(0)\nv_readfirstlane_b32 s40, v4\ns_cmp_lg_u32 s40, 3\ns_cbranch_scc1 {d}')
    A(f's_mov_b32 exec_lo, {hex(((1<<ngran)-1)&0xffffffff)}\ns_mov_b32 exec_hi, {hex(((1<<ngran)-1)>>32)}')
    for r in range(rounds):
        for k in range(4): A(f'ds_read_b128 {vr(t+16*r+4*k,4)}, v5 offset:{red+k*wstride+r*rstep}')
    for r in range(rounds):
        u=t+16*r
        A(f's_waitcnt lgkmcnt({2+4*(rounds-1-r)})')
        for j in range(4): A(f'v_add_f32 v{u+j}, v{u+j}, v{u+4+j}')
        A(f's_waitcnt lgkmcnt({4*(rounds-1-r)})')
        for j in range(4): A(f'v_add_f32 v{u+8+j}, v{u+8+j}, v{u+12+j}')
        for j in range(4): A(f'v_add_f32 v{u+j}, v{u+j}, v{u+8+j}')
        tagpack(u)
        A(f'global_store_dwordx4 {vst if r==0 else vst2}, {vr(u,4)}, s[{sb}:{sb+1}] sc1')
    A('s_mov_b64 exec, -1')
    signal(pflag)
    A(f'{d}:')
def gather(loads,D,lanes=None):
    n=len(loads); L=lab('G')
    full='-1' if lanes is None else lanes
    for i in range(n): A(f's_mov_b64 s[{44+2*i}:{45+2*i}], {full}')
    A(f'{L}:')
    for i,(vo,sb,im) in enumerate(loads):
        k=lab('K')
        A(f's_mov_b64 exec, s[{44+2*i}:{45+2*i}]\ns_cbranch_execz {k}\nglobal_load_dwordx4 {vr(D+4*i,4)}, {vo}, s[{sb}:{sb+1}] offset:{im} {LDF}\n{k}:')
    A(f's_mov_b64 exec, {full}\ns_mov_b64 vcc, 0')
    A('s_waitcnt vmcnt(0)')
    if DIAG:
        A(f's_add_u32 s{80+nst[0]}, s{80+nst[0]}, 1'); nst[0]+=1
    for i in range(n):
        r=D+4*i
        A(f'v_perm_b32 v4, v{r+1}, v{r}, s41\nv_perm_b32 v6, v{r+3}, v{r+2}, s42\nv_or_b32 v4, v4, v6\nv_cmp_ne_u32 s[{44+2*i}:{45+2*i}], s35, v4')
    A('s_sub_u32 s43, s43, 64\ns_cbranch_scc1 EXIT')
    for i in range(n): A(f's_or_b64 vcc, vcc, s[{44+2*i}:{45+2*i}]')
    A(f's_cbranch_scc1 {L}\ns_mov_b64 exec, -1')
def rb(d,s): A(f'v_cvt_pk_bf16_f32 v{d}, 0, {s}')
def lo(d,s): A(f'v_cvt_pk_bf16_f32 v{d}, {s}, 0')
def silu_lo(r,t):
    A(f'v_mul_f32 v{t}, 0xbfb8aa3b, v{r}\nv_exp_f32 v{t}, v{t}\ns_nop 0\nv_add_f32 v{t}, 1.0, v{t}\nv_rcp_f32 v{t}, v{t}\ns_nop 0\nv_mul_f32 v{r}, v{r}, v{t}')
    lo(r,f'v{r}')
def wsum(r,t,op='add'):
    for c in ('quad_perm:[1,0,3,2]','quad_perm:[2,3,0,1]','row_ror:4','row_ror:8'):
        A(f's_nop 1\nv_{op}_f32_dpp v{r}, v{r}, v{r} {c} row_mask:0xf bank_mask:0xf')
    for p in (16,32):
        A(f'v_mov_b32 v{t}, v{r}\ns_nop 1\nv_permlane{p}_swap_b32 v{r}, v{t}\nv_{op}_f32 v{r}, v{r}, v{t}')
def fin(m={}):
    if DBG:
        A('s_load_dwordx2 s[28:29], s[0:1], 96\ns_not_b32 s64, s64\ns_waitcnt lgkmcnt(0)\ns_mov_b64 exec, 1')
        for st,sl in list(m.items())+[(0,0)]: A(f'v_mov_b32 v4, s{64+st}\nglobal_atomic_umax v1, v4, s[28:29] offset:{4*sl}')
    elif DIAG:
        A('s_lshl_b32 s40, s2, 4\ns_add_u32 s40, s40, s3\ns_lshl_b32 s40, s40, 7')
        base(30,30,'s40',WSTAMP)
        for i in range(32): A(f'v_mov_b32 v{8+i}, s{64+i}')
        for i in range(8): A(f'global_store_dwordx4 v1, {vr(8+4*i,4)}, s[30:31] offset:{16*i}')
    A('s_endpgm')

A(f'; @launch grid=(256,1,1) block=(1024,1,1) lds={LDS}')
A(f'.amdgcn_target "amdgcn-amd-amdhsa--gfx950"\n.text\n.globl {NAME}\n.p2align 8\n.type {NAME},@function\n{NAME}:')
A('s_cmp_ge_u32 s2, 256\ns_cbranch_scc1 EXIT')
A('s_load_dwordx16 s[4:19], s[0:1], 0\ns_load_dwordx8 s[20:27], s[0:1], 64\ns_load_dwordx4 s[28:31], s[0:1], 96')
if DIAG:
    for i in range(32): A(f's_mov_b32 s{64+i}, 0')
A('v_lshrrev_b32 v1, 6, v0\nv_and_b32 v0, 63, v0\nv_mov_b32 v2, 1\nv_readfirstlane_b32 s3, v1\nv_mov_b32 v1, 0\nv_mov_b32 v3, 0xffffff00\nv_lshlrev_b32 v5, 4, v0')
A('s_mov_b32 s41, 0x0c0c0400\ns_mov_b32 s42, 0x04000c0c\ns_mov_b32 s43, 0x40000')
A('s_and_b32 s34, s3, 3\ns_lshr_b32 s32, s3, 2\ns_lshl_b32 s33, s34, 2\nv_mov_b32 v7, s33')
stamp(0)
A('s_waitcnt lgkmcnt(0)\ns_load_dword s35, s[30:31], 0')
A('s_cmp_eq_u32 s32, 1\ns_cbranch_scc1 G1\ns_cmp_eq_u32 s32, 2\ns_cbranch_scc1 G2\ns_cmp_eq_u32 s32, 3\ns_cbranch_scc1 G3')
def start():
    A('s_waitcnt lgkmcnt(0)\ns_barrier\ns_add_u32 s35, s35, 1\ns_and_b32 s36, s35, 0xff\ns_bfe_u32 s37, s35, 0x80008\ns_bfe_u32 s38, s35, 0x80010\ns_lshr_b32 s39, s35, 24')
def redaddr(d,colmask,wmul):
    A(f'v_and_b32 v{d}, {colmask}, v0\nv_lshlrev_b32 v{d}, 5, v{d}\nv_lshrrev_b32 v4, 4, v0\nv_lshl_add_u32 v{d}, v4, 3, v{d}\ns_mul_i32 s40, s34, {wmul}\nv_add_u32 v{d}, s40, v{d}')
W1,W2,WK,WV=48,64,96,112
A('v_lshrrev_b32 v8, 3, v0\nv_and_b32 v9, 7, v0\nv_lshlrev_b32 v9, 4, v9')
A('s_and_b32 s44, s2, 31\ns_lshr_b32 s45, s2, 5\ns_lshl_b32 s45, s45, 7\ns_lshl_b32 s46, s34, 5\ns_add_u32 s45, s45, s46')
A('s_lshl_b32 s46, s45, 1'); base(22,22,'s46')
A('v_lshlrev_b32 v10, 3, v8\nglobal_load_dwordx2 v[24:25], v10, s[22:23]')
A('s_mul_i32 s46, s45, 12288\ns_lshl_b32 s47, s44, 7\ns_add_u32 s46, s46, s47'); base(24,24,'s46')
A('v_mul_u32_u24 v10, 49152, v8\nv_add_u32 v10, v10, v9')
wloads(4,W1,'v10',24,12288,99)
A('s_lshr_b32 s46, s2, 2\ns_and_b32 s47, s2, 3\ns_lshl_b32 s48, s47, 8\ns_lshl_b32 s49, s34, 6\ns_add_u32 s48, s48, s49\ns_lshl_b32 s48, s48, 13\ns_lshl_b32 s49, s46, 7\ns_add_u32 s48, s48, s49')
base(10,10,'s48')
A('v_lshlrev_b32 v11, 16, v8\nv_add_u32 v11, v11, v9')
wloads(2,W2,'v11',10,8192,99); base(10,10,None,8192)
A('s_lshl_b32 s48, s47, 24\ns_lshl_b32 s49, s46, 14\ns_add_u32 s48, s48, s49\ns_lshl_b32 s49, s34, 12\ns_add_u32 s48, s48, s49\ns_add_u32 s48, s48, 15728640')
base(6,6,'s48'); base(8,8,'s48')
A('v_and_b32 v12, 15, v0\nv_lshrrev_b32 v13, 4, v0\nv_lshlrev_b32 v14, 8, v12\nv_lshl_add_u32 v14, v13, 4, v14')
A('v_lshlrev_b32 v15, 10, v13\nv_lshl_add_u32 v15, v12, 4, v15')
redaddr(16,7,256)
zero(28,8)
start(); stamp(1)
A('s_waitcnt vmcnt(6)')
A('v_and_b32 v27, 0xffff0000, v25\nv_lshlrev_b32 v26, 16, v25\nv_and_b32 v25, 0xffff0000, v24\nv_lshlrev_b32 v24, 16, v24')
for i in range(4): silu_lo(24+i,4)
for i in range(4):
    A(f's_waitcnt vmcnt({5-i if i==0 else 5})')
    gemv1(W1+4*i,24+i,28,6)
    A(f'global_load_dwordx4 {vr(W2+8+4*i,4)}, v11, s[10:11] nt'); base(10,10,None,8192)
red8(28,True)
A(f'ds_write_b64 v16, v[28:29] offset:{R1}')
A('s_lshr_b32 s48, s2, 5\ns_lshl_b32 s48, s48, 13\ns_lshl_b32 s49, s44, 8\ns_add_u32 s48, s48, s49'); base(50,30,'s48',WH)
lastpub(F['C1'],R1,256,16,'v5',50,F['P1'],t=28)
stamp(2)
A(f's_waitcnt vmcnt({THR})')
wloads(2,W2+24,'v11',10,8192)
for t in range(4): A(f'global_load_dwordx4 {vr(WK+4*t,4)}, v14, s[6:7] offset:{64*t} nt\ns_waitcnt vmcnt({THR})')
for t in range(4): A(f'global_load_dwordx4 {vr(WV+4*t,4)}, v15, s[8:9] offset:{256*t} nt\ns_waitcnt vmcnt({THR if t<3 else THR-2})')
signal(TOK,'v7')
stamp(3)
zero(28,8)
A('s_lshl_b32 s48, s34, 8\nv_lshlrev_b32 v10, 5, v8\nv_add_u32 v10, s48, v10')
A('s_lshl_b32 s48, s47, 14\ns_lshl_b32 s49, s46, 8\ns_add_u32 s48, s48, s49'); base(50,30,'s48',WQ)
spin(F['H'],4)
A(f'ds_read_b128 v[20:23], v10 offset:{L_H}\nds_read_b128 v[24:27], v10 offset:{L_H+16}\ns_waitcnt lgkmcnt(0)')
stamp(4)
for i in range(8): gemv1(W2+4*i,20+i,28,6)
red8(28,True)
A(f'ds_write_b64 v16, v[28:29] offset:{R2}')
lastpub(F['C2'],R2,256,16,'v5',50,F['P2'],t=28)
stamp(5)
A('s_waitcnt vmcnt(0)\ns_mov_b32 s48, 0x05040100\ns_mov_b32 s49, 0x07060302')
for e in range(8):
    for h in range(2): A(f'v_perm_b32 v{64+2*e+h}, v{WV+8*h+4+e//2}, v{WV+8*h+e//2}, s{48+(e&1)}')
A('v_and_b32 v10, 7, v0\nv_mul_u32_u24 v10, 272, v10\nv_lshl_add_u32 v10, v13, 4, v10')
zero(28,4)
A('s_lshl_b32 s48, s47, 3\ns_lshl_b32 s49, s34, 1\ns_add_u32 s48, s48, s49\ns_lshl_b32 s48, s48, 6\ns_add_u32 s48, s48, s46\ns_lshl_b32 s49, s48, 9')
base(50,30,'s49',WO_); A('s_lshl_b32 s49, s48, 4'); base(52,30,'s49',WML)
A('v_lshrrev_b32 v17, 5, v0\nv_and_b32 v18, 31, v0\nv_lshlrev_b32 v18, 4, v18\nv_lshl_add_u32 v19, v17, 15, v18\nv_lshlrev_b32 v20, 10, v17')
A('s_lshl_b32 s48, s34, 12\nv_lshlrev_b32 v21, 11, v13\nv_lshl_add_u32 v21, v12, 5, v21\nv_add_u32 v21, s48, v21')
A('s_lshl_b32 s48, s34, 10\nv_lshl_add_u32 v22, v17, 9, v18\nv_add_u32 v22, s48, v22')
A('s_lshl_b32 s48, s34, 6\nv_and_b32 v23, 7, v0\nv_lshlrev_b32 v23, 3, v23\nv_add_u32 v23, s48, v23\ns_lshl_b32 s48, s34, 4\nv_lshlrev_b32 v9, 3, v17\nv_add_u32 v9, s48, v9')
spin(F['Q'],4)
for t in range(4): A(f'ds_read_b128 {vr(32+4*t,4)}, v10 offset:{L_Q+64*t}')
stamp(6)
for t in range(4): A(f's_waitcnt lgkmcnt({3-t})\nv_mfma_f32_16x16x32_bf16 v[28:31], {vr(WK+4*t,4)}, {vr(32+4*t,4)}, v[28:31]')
A('s_nop 7')
for r in range(4): rb(28+r,f'v{28+r}')
for r in range(4): A(f'v_mul_f32 v{28+r}, 0x3db504f3, v{28+r}')
for r in range(4): rb(28+r,f'v{28+r}')
A('v_max3_f32 v24, v28, v29, v30\nv_max_f32 v24, v24, v31')
for p in (16,32): A(f'v_mov_b32 v4, v24\ns_nop 1\nv_permlane{p}_swap_b32 v24, v4\nv_max_f32 v24, v24, v4')
for r in range(4): A(f'v_sub_f32 v{28+r}, v{28+r}, v24')
for r in range(4): A(f'v_mul_f32 v{28+r}, 0x3fb8aa3b, v{28+r}')
for r in range(4): A(f'v_exp_f32 v{28+r}, v{28+r}')
A('s_nop 0\nv_cvt_pk_bf16_f32 v26, v28, v29\nv_cvt_pk_bf16_f32 v27, v30, v31\nv_add_f32 v25, v28, v29\nv_add_f32 v4, v30, v31\nv_add_f32 v25, v25, v4')
for e in range(8): A(f'v_mfma_f32_16x16x16_bf16 {vr(80+4*e,4)}, v[26:27], {vr(64+2*e,2)}, 0')
for p in (16,32): A(f'v_mov_b32 v4, v25\ns_nop 1\nv_permlane{p}_swap_b32 v25, v4\nv_add_f32 v25, v25, v4')
A(f'ds_write_b64 v23, v[24:25] offset:{L_ML}\ns_nop 2')
A('s_mov_b32 exec_hi, 0')
for r in range(4):
    for e in range(8): A(f'v_mov_b32 v{32+8*(r&1)+e}, v{80+4*e+r}')
    for h in range(2): A(f'ds_write_b128 v21, {vr(32+8*(r&1)+4*h,4)} offset:{L_OP+512*r+16*h}')
signal(F['C3']); spin(F['C3'],4)
for k in range(4): A(f'ds_read_b64 {vr(24+2*k,2)}, v9 offset:{L_ML+64*k}')
for k in range(4): A(f'ds_read_b128 {vr(32+4*k,4)}, v22 offset:{L_OP+4096*k}')
A('s_waitcnt lgkmcnt(4)\nv_max3_f32 v48, v24, v26, v28\nv_max_f32 v48, v48, v30')
for k in range(4): A(f'v_sub_f32 v{24+2*k}, v{24+2*k}, v48')
for k in range(4): A(f'v_mul_f32 v{24+2*k}, 0x3fb8aa3b, v{24+2*k}')
for k in range(4): A(f'v_exp_f32 v{24+2*k}, v{24+2*k}')
A('s_waitcnt lgkmcnt(0)\nv_mul_f32 v49, v24, v25')
for j in range(4): A(f'v_mul_f32 v{32+j}, v24, v{32+j}')
for k in range(1,4):
    for j in range(4): A(f'v_fmac_f32 v{32+j}, v{24+2*k}, v{32+4*k+j}')
    A(f'v_fmac_f32 v49, v{24+2*k}, v{25+2*k}')
tagpack(32)
A('global_store_dwordx4 v19, v[32:35], s[50:51] sc1\nv_mov_b32 v50, 0\nv_mov_b32 v51, 0')
tagpack(48)
A('s_mov_b32 exec_lo, 1\ns_mov_b32 exec_hi, 1\nglobal_store_dwordx4 v20, v[48:51], s[52:53] sc1')
signal(F['P3'])
stamp(7)
A('s_bfe_u32 s44, s2, 0x40003\ns_lshr_b32 s45, s2, 7\ns_lshl_b32 s45, s45, 3\ns_and_b32 s46, s2, 7\ns_or_b32 s45, s45, s46\ns_mul_i32 s46, s45, 224\ns_mul_i32 s47, s34, 56\ns_add_u32 s46, s46, s47\ns_lshl_b32 s46, s46, 11\ns_lshl_b32 s48, s44, 7\ns_add_u32 s46, s46, s48')
base(20,20,'s46')
A('v_and_b32 v9, 7, v0\nv_lshlrev_b32 v9, 4, v9\nv_mul_u32_u24 v10, 14336, v8\nv_add_u32 v10, v10, v9\nv_mul_u32_u24 v11, 28, v8\ns_lshl_b32 s47, s47, 2\nv_add_u32 v11, s47, v11')
A('s_lshl_b32 s48, s45, 12\ns_lshl_b32 s49, s44, 8\ns_add_u32 s48, s48, s49'); base(50,30,'s48',WY)
zero(28,8)
spin(TOK+32,1,'v7')
stamp(8)
wloads(7,64,'v10',20,2048)
spin(F['G'],4)
for i in range(7): A(f'ds_read_b32 v{20+i}, v11 offset:{L_G+4*i}')
A('s_waitcnt vmcnt(0) lgkmcnt(0)')
stamp(9)
for i in range(7): gemv1(64+4*i,20+i,28,6)
red8(28,True)
A(f'ds_write_b64 v16, v[28:29] offset:{R6}')
lastpub(F['C6'],R6,256,16,'v5',50,F['P6'],t=28)
stamp(10)
fin({2:8,3:9,5:10,7:11,10:12})
A('G1:')
A('v_lshrrev_b32 v8, 3, v0\nv_and_b32 v9, 7, v0\nv_lshlrev_b32 v9, 4, v9\nv_and_b32 v12, 15, v0\nv_lshrrev_b32 v13, 4, v0')
A('s_and_b32 s44, s2, 63\ns_lshr_b32 s45, s2, 6\ns_lshl_b32 s46, s45, 8\ns_lshl_b32 s47, s34, 6\ns_add_u32 s46, s46, s47\ns_lshl_b32 s47, s46, 1'); base(22,22,'s47')
A('v_lshlrev_b32 v10, 4, v8\nglobal_load_dwordx4 v[24:27], v10, s[22:23]')
A('s_mul_i32 s46, s46, 12288\ns_lshl_b32 s47, s44, 7\ns_add_u32 s46, s46, s47'); base(24,24,'s46',4096)
A('v_mul_u32_u24 v10, 0x18000, v8\nv_add_u32 v10, v10, v9')
A('s_lshl_b32 s48, s45, 14\ns_lshl_b32 s49, s44, 8\ns_add_u32 s48, s48, s49'); base(50,30,'s48',WM)
A('s_bfe_u32 s44, s2, 0x30003\ns_lshr_b32 s45, s2, 6\ns_lshl_b32 s45, s45, 3\ns_and_b32 s46, s2, 7\ns_or_b32 s45, s45, s46\ns_lshl_b32 s46, s45, 7\ns_lshl_b32 s47, s34, 5\ns_add_u32 s46, s46, s47\ns_lshl_b32 s46, s46, 11\ns_lshl_b32 s47, s44, 8\ns_add_u32 s46, s46, s47'); base(12,12,'s46')
A('v_lshlrev_b32 v11, 14, v13\nv_lshl_add_u32 v11, v12, 4, v11')
A('s_lshl_b32 s48, s45, 12\ns_lshl_b32 s49, s44, 9\ns_add_u32 s48, s48, s49'); base(52,30,'s48',WX)
redaddr(16,7,256); redaddr(17,15,512)
A('s_lshl_b32 s48, s34, 7\nv_lshlrev_b32 v18, 5, v13\nv_add_u32 v18, s48, v18')
start()
A('s_waitcnt vmcnt(0)')
for i in range(4): A(f'v_and_b32 v{37+2*i}, 0xffff0000, v{24+i}\nv_lshlrev_b32 v{36+2*i}, 16, v{24+i}')
for i in range(8): silu_lo(36+i,4)
zero(20,16)
spin(TOK,1,'v7'); stamp(1)
wloads(8,64,'v11',12,2048)
wloads(8,96,'v10',24,12288)
A(f's_waitcnt vmcnt({THR-2})'); signal(TOK+16,'v7'); stamp(2)
spin(F['O'],4)
A(f'ds_read_b128 v[44:47], v18 offset:{L_O}\nds_read_b128 v[48:51], v18 offset:{L_O+16}\ns_waitcnt lgkmcnt(0)')
stamp(3)
for i in range(8): gemv1(64+4*i,44+i,28,6)
red8(28,False)
A(f'ds_write_b64 v17, v[28:29] offset:{R4}')
lastpub(F['C4'],R4,512,32,'v5',52,F['P4'],t=44)
stamp(4)
A('s_waitcnt vmcnt(0)')
for i in range(8): gemv1(96+4*i,36+i,20,6)
red8(20,True)
A(f'ds_write_b64 v16, v[20:21] offset:{RM}')
lastpub(F['CM'],RM,256,16,'v5',50,F['PM'],t=44)
stamp(5)
fin({4:15})
A('G2:')
A('s_and_b32 s45, s2, 3\ns_lshr_b32 s44, s2, 2')
A('v_lshrrev_b32 v8, 3, v0\nv_and_b32 v9, 7, v0\nv_lshlrev_b32 v9, 4, v9')
A('s_lshl_b32 s46, s45, 8\ns_lshl_b32 s47, s34, 6\ns_add_u32 s46, s46, s47\ns_mul_i32 s46, s46, 7168\ns_lshl_b32 s47, s44, 7\ns_add_u32 s46, s46, s47')
base(16,16,'s46'); base(18,18,'s46')
A('v_mul_u32_u24 v10, 57344, v8\nv_add_u32 v10, v10, v9')
A('s_mul_i32 s48, s45, 14336\ns_lshl_b32 s49, s44, 8\ns_add_u32 s48, s48, s49'); base(50,30,'s48',WGU)
A('v_lshrrev_b32 v11, 4, v0\nv_mul_u32_u24 v11, 57344, v11\nv_and_b32 v12, 15, v0\nv_lshl_add_u32 v11, v12, 4, v11\nv_add_u32 v12, 172032, v11')
redaddr(13,7,1536)
A('s_lshl_b32 s48, s34, 8\nv_lshlrev_b32 v14, 5, v8\nv_add_u32 v14, s48, v14')
zero(16,48)
start()
spin(TOK+16,1,'v7'); stamp(1)
A('s_cmp_ge_u32 s2, 224\ns_cbranch_scc0 G2W'); signal(TOK+32,'v7'); fin()
A('G2W:')
for i in range(8):
    for m,sb in ((0,16),(1,18)):
        A(f'global_load_dwordx4 {vr(64+8*i+4*m,4)}, v10, s[{sb}:{sb+1}] nt')
        if i<7: base(sb,sb,None,7168)
        A(f's_waitcnt vmcnt({THR})')
A(f's_waitcnt vmcnt({THR-2})'); signal(TOK+32,'v7'); stamp(2)
spin(F['ABC'],4); stamp(3)
for i in range(8):
    pass
for p in range(3):
    A(f'ds_read_b64 v[8:9], v14 offset:{L_A+1024*p}')
    for i2 in range(4):
        a=8 if i2%2==0 else 6
        A('s_waitcnt lgkmcnt(0)')
        if i2<3: A(f'ds_read_b64 {vr(14-a,2)}, v14 offset:{L_A+1024*p+8*(i2+1)}')
        if p==0 and i2==3: A('s_waitcnt vmcnt(0)')
        for k in range(2):
            i=2*i2+k
            gemv1(64+8*i,a+k,16+16*p,4)
            for j in range(4): A(f'v_dot2c_f32_bf16 v{24+16*p+2*j}, v{68+8*i+j}, v{a+k}')
            for j in range(4): A(f'v_dot2c_f32_bf16 v{25+16*p+2*j}, v{68+8*i+j}, v4')
for q in range(6):
    red8(16+8*q,True); A(f'ds_write_b64 v13, {vr(16+8*q,2)} offset:{R5+256*q}')
lastpub(F['C5'],R5,1536,48,'v11',50,F['P5'],t=16,rounds=2,rstep=768,vst2='v12')
stamp(4)
fin({2:13,4:14})
A('G3:\ns_setprio 3')
A(f'v_lshlrev_b32 v8, 2, v0\nds_write_b32 v8, v1')
A('v_and_b32 v12, 15, v0\nv_lshrrev_b32 v13, 4, v0\nv_lshlrev_b32 v8, 5, v0')
A('global_load_dwordx4 v[16:19], v8, s[4:5]\nglobal_load_dwordx4 v[20:23], v8, s[4:5] offset:16')
A('v_lshl_add_u32 v14, v12, 2, v13\ns_lshl_b32 s48, s34, 6\nv_add_u32 v14, s48, v14')
A('s_and_b32 s28, s2, 3\ns_and_b32 s29, s2, 3')
A('s_lshl_b32 s48, s28, 9\nv_lshl_add_u32 v9, v14, 1, s48\nglobal_load_ushort v10, v9, s[4:5]')
A('s_and_b32 s48, s29, 3\ns_lshl_b32 s48, s48, 9\nv_lshl_add_u32 v15, v14, 1, s48\nglobal_load_ushort v11, v15, s[4:5]')
A('v_lshlrev_b32 v14, 2, v14')
if PRE:
    A('s_lshl_b32 s48, s2, 2\ns_add_u32 s48, s48, s34\ns_lshl_b32 s48, s48, 11'); base(50,30,'s48')
    for i in range(2): A(f'global_load_dwordx4 v[{60+4*i}:{63+4*i}], v5, s[50:51] offset:{1024*i} '+['','','sc0 sc1','sc1'][PRE])
start()
A('s_waitcnt vmcnt(0)')
for i in range(8): A(f'v_and_b32 v{33+2*i}, 0xffff0000, v{16+i}\nv_lshlrev_b32 v{32+2*i}, 16, v{16+i}')
A('v_add_f32 v24, v32, v33')
for i in range(2,16): A(f'v_add_f32 v24, v24, v{32+i}')
wsum(24,4); A('v_mul_f32 v24, 0x3a800000, v24\nv_mov_b32 v25, 0')
for i in range(16): A(f'v_sub_f32 v4, v{32+i}, v24\nv_fmac_f32 v25, v4, v4')
wsum(25,4); A('v_mul_f32 v25, 0x3a800000, v25')
rb(24,'v24'); rb(25,'v25'); A('v_add_f32 v25, 0x3727c5ac, v25'); rb(25,'v25'); A('v_sqrt_f32 v25, v25\ns_nop 0'); rb(25,'v25')
A('v_rcp_f32 v25, v25\nv_lshlrev_b32 v10, 16, v10\nv_lshlrev_b32 v11, 16, v11\nv_sub_f32 v10, v10, v24'); rb(10,'v10'); A('v_mul_f32 v10, v10, v25'); rb(10,'v10')
A('s_lshl_b32 s48, s28, 10\ns_lshl_b32 s49, s34, 8\ns_add_u32 s48, s48, s49'); base(4,30,'s48',WH); base(6,4,None,4096); base(8,4,None,8192); base(10,4,None,12288)
A('v_lshlrev_b32 v16, 14, v13\nv_lshl_add_u32 v16, v12, 4, v16')
stamp(1); spin(F['P1'],1); stamp(2)
gather([('v16',4,0),('v16',8,0),('v16',6,0),('v16',10,0)],32)
stamp(3)
for j in range(4): A(f'v_add_f32 v{32+j}, v{32+j}, v{36+j}\nv_add_f32 v{40+j}, v{40+j}, v{44+j}')
red4(32); red4(40)
rb(32,'v32'); rb(40,'v40'); A('v_add_f32 v40, 1.0, v40'); rb(40,'v40'); A('v_mul_f32 v40, v40, v10'); rb(40,'v40'); A('v_add_f32 v40, v40, v32'); lo(40,'v40')
A(f'ds_write_b32 v14, v40 offset:{L_H}'); signal(F['H'])
A('s_lshl_b32 s48, s28, 12\ns_lshl_b32 s49, s34, 10\ns_add_u32 s48, s48, s49'); base(4,30,'s48',WQ); base(6,4,None,16384); base(8,4,None,32768); base(10,4,None,49152)
A('v_lshrrev_b32 v17, 5, v0\ns_lshl_b32 s48, s34, 1\nv_add_u32 v17, s48, v17\nv_mul_u32_u24 v17, 272, v17\nv_and_b32 v18, 31, v0\nv_lshl_add_u32 v17, v18, 3, v17')
spin(F['P2'],1); stamp(4)
gather([('v5',4,0),('v5',6,0),('v5',8,0),('v5',10,0)],32)
stamp(5)
for j in range(4): A(f'v_add_f32 v{32+j}, v{32+j}, v{36+j}\nv_add_f32 v{40+j}, v{40+j}, v{44+j}')
for j in range(4): A(f'v_add_f32 v{32+j}, v{32+j}, v{40+j}')
A(f'v_cvt_pk_bf16_f32 v32, v32, v33\nv_cvt_pk_bf16_f32 v33, v34, v35\nds_write_b64 v17, v[32:33] offset:{L_Q}'); signal(F['Q'])
A('s_lshr_b32 s48, s2, 6\ns_lshl_b32 s48, s48, 3\ns_and_b32 s49, s2, 7\ns_or_b32 s48, s48, s49\ns_lshl_b32 s49, s48, 10'); base(12,30,'s49',WML)
A('s_lshl_b32 s48, s48, 15\ns_lshl_b32 s49, s34, 7\ns_add_u32 s48, s48, s49'); base(4,30,'s48',WO_+4096); base(6,4,None,8192); base(8,4,None,16384); base(10,4,None,24576)
A('v_lshrrev_b32 v18, 3, v0\nv_and_b32 v19, 7, v0\nv_lshlrev_b32 v16, 9, v18\nv_lshl_add_u32 v16, v19, 4, v16\nv_lshlrev_b32 v18, 2, v18')
A('v_lshl_add_u32 v17, v19, 2, v13\ns_lshl_b32 s48, s34, 5\nv_add_u32 v17, s48, v17\nv_lshlrev_b32 v17, 2, v17')
spin(F['P3'],4); stamp(6)
gather([('v5',12,0)]+[('v16',4+2*(i//2),-4096 if i%2==0 else 0) for i in range(8)],28)
stamp(7)
A('v_and_b32 v28, v3, v28\nv_mov_b32 v24, v28'); wsum(24,4,'max')
A('v_sub_f32 v28, v28, v24\nv_mul_f32 v28, 0x3fb8aa3b, v28\nv_exp_f32 v28, v28\ns_nop 0')
for i in range(8): A(f'ds_bpermute_b32 v{64+i}, v18, v28 offset:{32*i}')
A('v_mul_f32 v29, v29, v28'); wsum(29,4); A('v_rcp_f32 v29, v29\ns_waitcnt lgkmcnt(0)')
for j in range(4): A(f'v_mul_f32 v{32+j}, v64, v{32+j}')
for i in range(1,8):
    for j in range(4): A(f'v_fmac_f32 v{32+j}, v{64+i}, v{32+4*i+j}')
red4(32); A('s_nop 1\nv_add_f32_dpp v32, v32, v32 row_ror:8 row_mask:0xf bank_mask:0xf\nv_mul_f32 v32, v32, v29'); lo(32,'v32')
A(f'ds_write_b32 v17, v32 offset:{L_O}'); signal(F['O'])
A('s_cmp_ge_u32 s2, 224\ns_cbranch_scc1 G3GU')
A('s_lshl_b32 s48, s29, 10\ns_lshl_b32 s49, s34, 8\ns_add_u32 s48, s48, s49'); base(4,30,'s48',WX)
base(6,4,None,0x8000); base(8,4,None,0x10000); base(10,4,None,0x18000)
A('s_lshl_b32 s48, s29, 10\ns_lshl_b32 s49, s34, 8\ns_add_u32 s48, s48, s49'); base(12,30,'s48',WM+4096); base(14,12,None,8192)
A('v_lshlrev_b32 v16, 12, v13\nv_lshl_add_u32 v16, v12, 4, v16\nv_add_u32 v17, 16384, v16\nv_lshlrev_b32 v18, 14, v13\nv_lshl_add_u32 v18, v12, 4, v18')
spin(F['P4'],1); stamp(8)
gather([('v16' if i%2==0 else 'v17',4+2*(i//2),0) for i in range(8)],32)
stamp(9)
for i in range(1,8):
    for j in range(4): A(f'v_add_f32 v{32+j}, v{32+j}, v{32+4*i+j}')
red4(32); rb(20,'v32')
spin(F['PM'],1)
gather([('v18',12,-4096),('v18',12,0),('v18',14,-4096),('v18',14,0)],32)
stamp(10)
for i in range(4): red4(32+4*i)
for i in range(4): rb(32+4*i,f'v{32+4*i}')
A('v_mul_f32 v20, v20, v32'); rb(20,'v20'); A('v_add_f32 v20, v20, v11'); rb(20,'v20')
A('v_mov_b32 v21, v44\nv_add_f32 v40, 1.0, v40'); rb(40,'v40'); A('v_mul_f32 v41, v40, v20'); lo(41,'v41'); A('v_lshrrev_b32 v40, 16, v40\nv_lshrrev_b32 v36, 16, v36')
A(f'ds_write_b32 v14, v41 offset:{L_A}\nds_write_b32 v14, v40 offset:{L_A+1024}\nds_write_b32 v14, v36 offset:{L_A+2048}'); signal(F['ABC'])
A('s_cmp_ge_u32 s2, 4\ns_cbranch_scc1 G3GU0')
A('v_mov_b32 v32, v20\nv_mul_f32 v33, v20, v20\nv_mov_b32 v34, 0\nv_mov_b32 v35, 0'); wsum(32,4); wsum(33,4); tagpack(32)
A('s_lshl_b32 s48, s29, 6\ns_lshl_b32 s49, s34, 4\ns_add_u32 s48, s48, s49'); base(4,30,'s48',WST)
A('s_mov_b64 exec, 1\nglobal_store_dwordx4 v1, v[32:35], s[4:5] sc1\ns_mov_b64 exec, -1')
A('G3GU0:'); spin(F['P5'],1)
A('G3GU:')
A('s_lshr_b32 s48, s2, 7\ns_lshl_b32 s48, s48, 3\ns_and_b32 s49, s2, 7\ns_or_b32 s48, s48, s49\ns_mul_i32 s48, s48, 896\ns_mul_i32 s49, s34, 224\ns_add_u32 s48, s48, s49'); base(4,30,'s48',WGU)
for q in range(1,6): base(4+2*q,2+2*q,None,57344)
base(16,30,None,WST)
A('v_mul_u32_u24 v16, 14336, v13\nv_min_u32 v17, 13, v12\nv_lshl_add_u32 v16, v17, 4, v16\nv_lshlrev_b32 v18, 4, v12')
A('v_lshl_add_u32 v17, v17, 2, v13\ns_mul_i32 s48, s34, 56\nv_add_u32 v17, s48, v17\nv_lshlrev_b32 v17, 2, v17')
stamp(11)
gather([('v18',16,0)]+[('v16',4+2*q,0) for q in range(6)],28)
stamp(12)
for c in ('quad_perm:[1,0,3,2]','quad_perm:[2,3,0,1]','row_ror:4','row_ror:8'):
    A(f's_nop 0\nv_add_f32_dpp v28, v28, v28 {c} row_mask:0xf bank_mask:0xf\nv_add_f32_dpp v29, v29, v29 {c} row_mask:0xf bank_mask:0xf')
for q in range(6): red4(32+4*q)
A('v_mul_f32 v28, 0x3a800000, v28\nv_mul_f32 v29, 0x3a800000, v29\nv_fma_f32 v29, -v28, v28, v29\nv_add_f32 v29, 0x3727c5ac, v29\nv_rsq_f32 v29, v29')
A('v_fma_f32 v32, -v28, v40, v32\nv_fma_f32 v36, -v28, v44, v36\nv_fma_f32 v32, v32, v29, v48\nv_fma_f32 v36, v36, v29, v52'); rb(32,'v32'); rb(36,'v36')
A('v_mul_f32 v33, v32, v32\nv_mul_f32 v33, 0x3d372713, v33\nv_fma_f32 v33, v33, v32, v32\nv_mul_f32 v33, 0xc0135761, v33\nv_exp_f32 v33, v33\ns_nop 0\nv_add_f32 v33, 1.0, v33\nv_rcp_f32 v33, v33\ns_nop 0\nv_mul_f32 v32, v32, v33')
rb(32,'v32'); A('v_mul_f32 v32, v32, v36'); lo(32,'v32')
A(f'ds_write_b32 v17, v32 offset:{L_G}'); signal(F['G'])
A('s_cmp_ge_u32 s2, 4\ns_cbranch_scc1 G3END')
A('s_lshl_b32 s48, s29, 10\ns_lshl_b32 s49, s34, 8\ns_add_u32 s48, s48, s49'); base(4,30,'s48',WY); base(6,4,None,0x8000)
A('v_lshlrev_b32 v16, 12, v13\nv_lshl_add_u32 v16, v12, 4, v16\nv_add_u32 v17, 16384, v16')
spin(F['P6'],1); stamp(13)
gather([('v16',4,0),('v17',4,0),('v16',6,0),('v17',6,0)],32)
for j in range(4): A(f'v_add_f32 v{32+j}, v{32+j}, v{36+j}\nv_add_f32 v{40+j}, v{40+j}, v{44+j}')
for j in range(4): A(f'v_add_f32 v{32+j}, v{32+j}, v{40+j}')
red4(32); rb(32,'v32'); A('v_mul_f32 v32, v32, v21'); rb(32,'v32'); A('v_add_f32 v32, v32, v20'); lo(32,'v32')
A('global_store_short v15, v32, s[26:27]')
A('s_cmp_lg_u32 s2, 0\ns_cbranch_scc1 G3END\ns_cmp_lg_u32 s34, 0\ns_cbranch_scc1 G3END\nv_mov_b32 v4, s35\ns_mov_b64 exec, 1\nglobal_store_dword v1, v4, s[30:31] sc1\ns_mov_b64 exec, -1')
A('G3END:'); stamp(14)
fin({3:1,5:2,7:3,9:4,10:5,12:6,14:7})
A('EXIT:\ns_endpgm')
A(f'''.section .rodata,"a"
.p2align 6
.amdhsa_kernel {NAME}
  .amdhsa_next_free_vgpr 128
  .amdhsa_next_free_sgpr 96
  .amdhsa_accum_offset 128
  .amdhsa_group_segment_fixed_size 0
  .amdhsa_kernarg_size 112
  .amdhsa_user_sgpr_count 2
  .amdhsa_user_sgpr_kernarg_segment_ptr 1
  .amdhsa_system_sgpr_workgroup_id_x 1
.end_amdhsa_kernel''')
import re
print(re.sub(r'(global_store_dwordx4 .*) sc1',lambda m:m.group(1)+' '+STF,"\n".join(o)))
```
